```python
import torch

def _softmax(x, axis=-1):
    return torch.softmax(x, dim=axis)
def _gelu(x):
    return torch.nn.functional.gelu(x, approximate="tanh")
def _silu(x):
    return torch.nn.functional.silu(x)
def _sigmoid(x):
    return torch.sigmoid(x)
def _layernorm(x, axis=-1, eps=1e-5):
    m = x.mean(dim=axis, keepdim=True)
    v = x.var(dim=axis, keepdim=True, unbiased=False)
    return (x - m) / torch.sqrt(v + eps)
def _scatter_add(tgt, idx, src, axis=0):
    return tgt.clone().index_add_(axis, idx, src)
def _segment_sum(src, seg, n):
    out = torch.zeros((n,) + src.shape[1:], dtype=src.dtype)
    return out.index_add_(0, seg, src)
def _pad(x, pw):
    flat = tuple(v for pair in reversed(pw) for v in pair)
    return torch.nn.functional.pad(x, flat)

kernel_name = 'gated_mix__spectral_fnet__linear_kernel_hedgehog__prompt'

def setup_inputs():

    _w = (lambda a: (lambda t: t.to(torch.bfloat16) if t.is_floating_point() else t)(torch.as_tensor(a)))
    def _A_setup():
        B, S, D = 1, 2048, 576
        ns = torch.arange(S)[:, None] * torch.arange(S)[None, :]
        nd = torch.arange(D)[:, None] * torch.arange(D)[None, :]
        Ws_re = torch.cos(-2.0 * torch.pi * ns / S).to(float)
        Ws_im = torch.sin(-2.0 * torch.pi * ns / S).to(float)
        Wd_re = torch.cos(-2.0 * torch.pi * nd / D).to(float)
        Wd_im = torch.sin(-2.0 * torch.pi * nd / D).to(float)
        return {
            "x": _w((lambda *s: torch.randn(*s, dtype=torch.bfloat16) * 0.1)(B, S, D)),
            "dft_seq_re": _w(Ws_re),
            "dft_seq_im": _w(Ws_im),
            "dft_hid_re": _w(Wd_re),
            "dft_hid_im": _w(Wd_im),
        }
    _A_in = _A_setup()

    def _B_setup():
        B, S, D, H = 1, 2048, 576, 32
        Dh = D // H
        return {
            "x": _w((lambda *s: torch.randn(*s, dtype=torch.bfloat16) * 0.1)(B, S, D)),
            "wqkv": _w((lambda *s: torch.randn(*s, dtype=torch.bfloat16) * 1.6)(D, 3 * D)),
            "w_phi": _w((lambda *s: torch.randn(*s, dtype=torch.bfloat16) * 1.6)(H, Dh, Dh) * (Dh ** -0.5)),
            "wo": _w((lambda *s: torch.randn(*s, dtype=torch.bfloat16) * 1.6)(D, D)),
        }
    _B_in = _B_setup()

    return {
        "A_x": _A_in["x"],
        "A_dft_seq_re": _A_in["dft_seq_re"],
        "A_dft_seq_im": _A_in["dft_seq_im"],
        "A_dft_hid_re": _A_in["dft_hid_re"],
        "A_dft_hid_im": _A_in["dft_hid_im"],
        "B_x": _B_in["x"],
        "B_wqkv": _B_in["wqkv"],
        "B_w_phi": _B_in["w_phi"],
        "B_wo": _B_in["wo"],
        "gate_w": _w((lambda *s: torch.randn(*s, dtype=torch.bfloat16) * 0.1)(576) * 16.0),
    }

def reference(A_x, A_dft_seq_re, A_dft_seq_im, A_dft_hid_re, A_dft_hid_im, B_x, B_wqkv, B_w_phi, B_wo, gate_w):
    def _A_ref(x, dft_seq_re, dft_seq_im, dft_hid_re, dft_hid_im):
        a = torch.einsum("bsd,ed->bse", x, dft_hid_re)
        b = torch.einsum("bsd,ed->bse", x, dft_hid_im)
        y = torch.einsum("ts,bse->bte", dft_seq_re, a) - torch.einsum("ts,bse->bte", dft_seq_im, b)
        return y

    def _B_ref(x, wqkv, w_phi, wo):
        B, S, D = x.shape
        H = 32; Dh = D // H
        qkv = (lambda x, *d: x.permute(*d))((x @ wqkv).reshape(B, S, 3, H, Dh), 2, 0, 3, 1, 4)
        q, k, v = qkv[0], qkv[1], qkv[2]
        pq = torch.einsum("bhsd,hdf->bhsf", q, w_phi)
        pk = torch.einsum("bhsd,hdf->bhsf", k, w_phi)
        phi_q = torch.concatenate([_softmax(pq, axis=-1), _softmax(-pq, axis=-1)], axis=-1)
        phi_k = torch.concatenate([_softmax(pk, axis=-1), _softmax(-pk, axis=-1)], axis=-1)
        kv = torch.einsum("bhsf,bhsd->bhfd", phi_k, v)
        z  = torch.einsum("bhsf->bhf", phi_k)
        num = torch.einsum("bhqf,bhfd->bhqd", phi_q, kv)
        den = torch.einsum("bhqf,bhf->bhq", phi_q, z)[..., None] + 1e-6
        o = num / den
        return (lambda x, *d: x.permute(*d))(o, 0, 2, 1, 3).reshape(B, S, D) @ wo

    x = A_x
    g = _sigmoid((x * gate_w).sum(-1, keepdims=True))
    a = _A_ref(x, A_dft_seq_re, A_dft_seq_im, A_dft_hid_re, A_dft_hid_im)
    b = _B_ref(x, B_wqkv, B_w_phi, B_wo)
    return g * a + (1 - g) * b
```

```python
import re

TRANS = ("v_exp_f32", "v_log_f32", "v_rcp_f32", "v_rsq_f32", "v_sqrt_f32", "v_sin_f32", "v_cos_f32")

def regs_of(tok):
    tok = tok.strip()
    tok = tok.lstrip("-")
    if tok.startswith("abs(") or tok.startswith("|"):
        tok = tok.replace("abs(", "").replace(")", "").replace("|", "")
    m = re.fullmatch(r"([vsa])(\d+)", tok)
    if m: return {(m.group(1), int(m.group(2)))}
    m = re.fullmatch(r"([vsa])\[(\d+):(\d+)\]", tok)
    if m: return {(m.group(1), n) for n in range(int(m.group(2)), int(m.group(3)) + 1)}
    if tok == "vcc": return {("s", "vcc")}
    if tok in ("exec", "exec_lo", "exec_hi"): return {("s", "exec")}
    if tok == "m0": return {("s", "m0")}
    return set()

class Ins:
    def __init__(self, text):
        self.text = text
        t = text.split(";")[0].strip()
        self.label = t.endswith(":")
        self.directive = t.startswith(".")
        self.op = t.split()[0] if t else ""
        rest = t[len(self.op):].strip()
        ops = [o.strip() for o in re.split(r",(?![^\[]*\])", rest)] if rest else []
        mods = ""
        if ops:
            parts = ops[-1].split()
            ops[-1] = parts[0] if parts else ""
            mods = " ".join(parts[1:])
        self.ops, self.mods = ops, mods
        op = self.op
        self.w, self.r = set(), set()
        self.kind = "other"
        self.srcC = set(); self.srcAB = set()
        if op.startswith("v_mfma"):
            self.kind = "mfma"
            self.w = regs_of(ops[0]); self.srcAB = regs_of(ops[1]) | regs_of(ops[2]); self.srcC = regs_of(ops[3])
            self.r = self.srcAB | self.srcC
            self.passes = 8 if "32x32" in op else 4
        elif op.startswith("v_"):
            self.kind = "valu"
            self.w = regs_of(ops[0])
            for o in ops[1:]: self.r |= regs_of(o)
            if op.startswith("v_permlane"):
                self.w |= regs_of(ops[1]); self.r |= regs_of(ops[0])
            if op.startswith(("v_fmac", "v_dot2c", "v_pk_fmac")): self.r |= regs_of(ops[0])
            if "_co_" in op:
                self.w |= regs_of(ops[1])
        elif op.startswith("ds_"):
            self.kind = "ds"
            if op.startswith(("ds_read", "ds_bpermute", "ds_permute", "ds_swizzle")) or "_rtn" in op:
                self.w = regs_of(ops[0])
                for o in ops[1:]: self.r |= regs_of(o)
                if "d16" in op: self.r |= self.w
            else:
                for o in ops: self.r |= regs_of(o)
        elif op.startswith(("buffer_", "global_")):
            self.kind = "vmem"
            self.lds = " lds" in (" " + mods) or "_lds_" in op
            if op.startswith(("buffer_load", "global_load")) and not self.lds:
                self.w = regs_of(ops[0])
                for o in ops[1:]: self.r |= regs_of(o)
            else:
                for o in ops: self.r |= regs_of(o)
                if self.lds: self.r |= {("s", "m0")}
            self.wide_store = set()
            if re.match(r"buffer_store_dwordx[34]", op): self.wide_store = regs_of(ops[0])
            if re.match(r"global_store_dwordx[34]", op): self.wide_store = regs_of(ops[1])
        elif op.startswith("s_"):
            self.kind = "salu"
            if op.startswith(("s_cmp", "s_bitcmp", "s_cbranch", "s_branch", "s_waitcnt", "s_barrier", "s_nop", "s_endpgm", "s_setprio", "s_sleep")):
                for o in ops: self.r |= regs_of(o)
                if "vcc" in op: self.r |= {("s", "vcc")}
            else:
                self.w = regs_of(ops[0])
                for o in ops[1:]: self.r |= regs_of(o)
                if "saveexec" in op: self.w |= {("s", "exec")}
    def states(self):
        if self.label or self.directive or not self.op: return 0
        if self.op == "s_nop": return int(self.ops[0]) + 1
        return 1

def need(p, c):
    n = 0
    vw = {x for x in p.w if x[0] == "v"}; sw = {x for x in p.w if x[0] == "s"}
    if p.kind == "valu":
        if c.kind == "mfma" and vw & c.r: n = max(n, 2)
        if c.op.startswith("v_permlane") and vw & c.r: n = max(n, 2)
        if "dpp" in c.op and vw & c.r: n = max(n, 2)
        if c.op.startswith(("v_readfirstlane", "v_readlane")) and vw & c.r: n = max(n, 1)
        if p.op.replace("_e64", "").replace("_e32", "") in TRANS and c.kind in ("valu", "mfma", "ds", "vmem") and vw & c.r: n = max(n, 1)
        if sw:
            if c.kind == "vmem" and sw & c.r: n = max(n, 5)
            if c.kind == "valu" and sw & c.r: n = max(n, 2)
            if c.kind == "salu" and sw & c.r: n = max(n, 4)
            if c.op.startswith("v_cndmask") and ("s", "vcc") in sw and len(c.ops) == 4 and c.ops[3] == "vcc": n = max(n, 2)
    if p.kind == "mfma":
        big = p.passes == 8
        if c.kind == "mfma":
            if p.w & c.srcAB: n = max(n, 12 if big else 8)
            if p.w & c.srcC and not (p.w == c.srcC and p.passes == c.passes): n = max(n, 10 if big else 6)
            if p.w & c.w and not (p.w & c.srcC): n = max(n, 12 if big else 8)
        elif c.kind in ("valu", "ds", "vmem"):
            if p.w & (c.r | c.w): n = max(n, 12 if big else 8)
            if c.kind == "valu" and p.srcC & c.w: n = max(n, 7 if big else 3)
    if p.kind == "salu" and ("s", "m0") in p.w and c.kind == "vmem" and ("s", "m0") in c.r: n = max(n, 1)
    if p.kind == "vmem" and getattr(p, "wide_store", None) and p.wide_store & c.w: n = max(n, 2)
    return n

class Asm:
    def __init__(self):
        self.ins = []
        self.vm = []; self.lg = []
        self.nops = 0
    def __call__(self, text, tag=None):
        for line in text.strip("\n").split("\n"):
            line = line.strip()
            if not line or line.startswith(";"): continue
            self.one(line, tag)
    def one(self, line, tag=None):
        c = Ins(line)
        if not (c.label or c.directive):
            dist = 0; req = 0
            for p in reversed(self.ins):
                if dist >= 12: break
                if p.op in ("s_branch", "s_endpgm"): break
                if not (p.label or p.directive):
                    req = max(req, need(p, c) - dist)
                dist += p.states()
            if req > 0:
                self.ins.append(Ins(f"s_nop {req-1}")); self.nops += 1
            if c.kind == "vmem": self.vm.append(tag)
            if c.kind == "ds": self.lg.append(tag)
            if c.op == "s_waitcnt":
                m = re.search(r"vmcnt\((\d+)\)", line)
                if m: n = int(m.group(1)); self.vm = self.vm[max(0, len(self.vm)-n):] if n else []
                m = re.search(r"lgkmcnt\((\d+)\)", line)
                if m: n = int(m.group(1)); self.lg = self.lg[max(0, len(self.lg)-n):] if n else []
        self.ins.append(c)
    def _cnt(self, q, tag):
        tags = tag if isinstance(tag, list) else [tag]
        idx = [i for i, t in enumerate(q) if t in tags]
        return None if not idx else len(q) - 1 - idx[-1]
    def wait(self, vm=None, lg=None):
        parts = []
        if vm is not None:
            n = self._cnt(self.vm, vm)
            if n is not None: parts.append(f"vmcnt({min(n, 63)})")
        if lg is not None:
            n = self._cnt(self.lg, lg)
            if n is not None: parts.append(f"lgkmcnt({min(n, 15)})")
        if parts: self.one("s_waitcnt " + " ".join(parts))
    def reset_counts(self):
        self.vm = []; self.lg = []
    def text(self):
        return "\n".join((i.text if (i.label or i.directive) else "  " + i.text) for i in self.ins) + "\n"

def vr(a, n=1): return f"v{a}" if n == 1 else f"v[{a}:{a+n-1}]"
def sr(a, n=1): return f"s{a}" if n == 1 else f"s[{a}:{a+n-1}]"
```

```python
import sys, subprocess, re, os
from asmlib import *
KN = "gated_mix__spectral_fnet__linear_kernel_hedgehog__prompt_kernel"
CNT, WP, PART, GM, OM, GATE, STAMP = 0, 0x10000, 0x210000, 0x300000, 0x540000, 0x780000, 0x800000
WS_BYTES = 0x1000000
WPJ = 129024
WK, WV, WX, WQ = 0, 36864, 73728, 92160
def cnt_off(t): return CNT + t*16*256
PS = 147456; PH = 129024; VF = 149504; KVI = 157696; LC = 163808
HI, HE, HF, WOI, GI, OS = 0, 36864, 131072, 46080, 0, 149504
LDS_BYTES = 163840
OOB = 0x7FFFFFF0
SPIN_MAX = 200000
sW, sI, sJ, sSLOT = 4, 5, 6, 7
X, W, PHI, HID, WO, GW, OUT, DBG, WS = 8, 12, 16, 20, 24, 28, 32, 36, 40
RC, T1, T2 = 56, 65, 74
sC = 88
sSP = 87
def srd(b): return f"s[{b}:{b+3}]"
XR = 112
def xreg(kk, rb): return vr(XR + 8*kk + 4*rb, 4)
def mask(f):
    m = 0
    for l in range(64):
        if f(l): m |= 1 << l
    return m

class G(Asm):
    def __init__(self, diag):
        super().__init__(); self.diag = diag; self.nlab = 0; self.nst = 0
    def lab(self, p):
        self.nlab += 1; return f"L_{p}{self.nlab}"
    def exec_(self, m):
        lo, hi = m & 0xFFFFFFFF, m >> 32
        if m == (1 << 64) - 1: self("s_mov_b64 exec, -1")
        elif hi == 0 and lo < 0x80000000: self(f"s_mov_b64 exec, {hex(lo)}")
        else: self(f"s_mov_b32 exec_lo, {hex(lo)}\ns_mov_b32 exec_hi, {hex(hi)}")
    def full(self): self("s_mov_b64 exec, -1")
    def stamp(self):
        if not self.diag: return
        n = self.nst
        if n > 0: self(f"v_writelane_b32 v15, s{98 + 2*((n-1)&1)}, {n-1}")
        self(f"s_memtime s[{98+2*(n&1)}:{99+2*(n&1)}]")
        self.nst += 1
    def stamp_end(self):
        if not self.diag: return
        self.stamp(); n = self.nst
        self(f"""s_waitcnt lgkmcnt(0)
v_writelane_b32 v15, s{98 + 2*((n-1)&1)}, {n-1}
v_writelane_b32 v15, s96, 62
v_writelane_b32 v15, s94, 63
s_lshl_b32 s3, s2, 3
s_add_u32 s3, s3, s93
s_lshl_b32 s3, s3, 8
s_add_u32 s3, s3, {STAMP}
v_lshlrev_b32 v14, 2, v0
buffer_store_dword v15, v14, {srd(WS)}, s3 offen""")
    def lds_arrive(self, idx):
        self(f"v_mov_b32 v4, {LC}\nv_mov_b32 v5, 1")
        self.exec_(1)
        self(f"ds_add_u32 v4, v5 offset:{4*idx}")
        self.full()
    def lds_wait(self, idx):
        L, E = self.lab("lw"), self.lab("le")
        self(f"""s_mov_b32 s{sSP}, 0
{L}:
ds_read_b32 v6, v4 offset:{4*idx}
s_add_u32 s{sSP}, s{sSP}, 1
s_cmp_gt_u32 s{sSP}, {SPIN_MAX}
s_cbranch_scc1 {E}
s_waitcnt lgkmcnt(0)
v_cmp_gt_u32 vcc, 4, v6
s_cbranch_vccnz {L}
{E}:
s_waitcnt lgkmcnt(0)""")
    def poll(self, res, vaddr, soff, target, first=True):
        L, E, C = self.lab("pl"), self.lab("pe"), self.lab("pc")
        a = "off" if vaddr is None else vaddr
        oe = "" if vaddr is None else "offen "
        self(f"s_mov_b32 s{sSP}, 0")
        if not first: self(f"s_branch {C}")
        self(f"""{L}:
buffer_load_dword v7, {a}, {srd(res)}, {soff} {oe}sc1
s_add_u32 s{sSP}, s{sSP}, 1
s_cmp_gt_u32 s{sSP}, {SPIN_MAX}
s_cbranch_scc1 {E}
{C}:
s_waitcnt vmcnt(0)
v_cmp_gt_u32 vcc, {target}, v7
s_cbranch_vccnz {L}
{E}:
s_waitcnt vmcnt(0)""")
    def signal(self, idx, soff, pre=None):
        E = self.lab("sg")
        self.lds_arrive(idx)
        self(f"s_cmp_lg_u32 s{sW}, 0\ns_cbranch_scc1 {E}")
        sv = (list(self.vm), list(self.lg))
        self.lds_wait(idx)
        if pre: pre()
        self.exec_(1)
        self(f"buffer_atomic_add v5, off, {srd(WS)}, {soff} sc1")
        self.full()
        return E, sv

def mfma16(a, d, x, y, c): a(f"v_mfma_f32_16x16x32_bf16 {vr(d,4)}, {x}, {y}, {c}")

def xreads(a, c):
    if c in (4, 8): a("v_add_u32 v8, 0x10000, v8\nv_add_u32 v9, 0x10000, v9")
    for kp in range(2):
        for rb in range(2):
            a(f"ds_read_b128 {xreg(2*c+kp, rb)}, v{8+kp} offset:{(c&3)*16384 + rb*2048}", tag=("x", c))

def softmax(a, isq):
    U, Wr, EP, EM, PK = 16, 28, 40, 58, 76
    for r in range(10): a(f"v_permlane16_swap_b32 v{U+r}, v{Wr+r}")
    p = [U+r for r in range(8)] + [Wr+r for r in range(8)] + [U+8, Wr+8]
    MX, MN = 96, 97
    a(f"v_max3_f32 v{MX}, v{p[0]}, v{p[1]}, v{p[2]}\nv_min3_f32 v{MN}, v{p[0]}, v{p[1]}, v{p[2]}")
    for k in range(3, 17, 2):
        a(f"v_max3_f32 v{MX}, v{MX}, v{p[k]}, v{p[k+1]}\nv_min3_f32 v{MN}, v{MN}, v{p[k]}, v{p[k+1]}")
    a(f"v_max_f32 v{MX}, v{MX}, v{p[17]}\nv_min_f32 v{MN}, v{MN}, v{p[17]}")
    a(f"v_pk_mul_f32 v[{MX}:{MN}], v[{MX}:{MN}], s[{sC}:{sC+1}] neg_lo:[1,0]")
    for k in range(0, 16, 2):
        a(f"v_pk_fma_f32 {vr(EP+k,2)}, {vr(p[k],2)}, s[{sC}:{sC+1}], v[{MX}:{MN}] op_sel:[0,0,0] op_sel_hi:[1,1,0]")
        a(f"v_pk_fma_f32 {vr(EM+k,2)}, {vr(p[k],2)}, s[{sC}:{sC+1}], v[{MX}:{MN}] op_sel:[0,0,1] op_sel_hi:[1,1,1] neg_lo:[1,0,0] neg_hi:[1,0,0]")
    for k in (16, 17):
        a(f"v_fma_f32 v{EP+k}, v{p[k]}, s{sC}, v{MX}\nv_fma_f32 v{EM+k}, -v{p[k]}, s{sC}, v{MN}")
    for k in range(36): a(f"v_exp_f32 v{EP+k}, v{EP+k}")
    SP, SM = 98, 100
    a(f"v_pk_add_f32 {vr(SP,2)}, {vr(EP,2)}, {vr(EP+2,2)}\nv_pk_add_f32 {vr(SM,2)}, {vr(EM,2)}, {vr(EM+2,2)}")
    for k in range(4, 18, 2):
        a(f"v_pk_add_f32 {vr(SP,2)}, {vr(SP,2)}, {vr(EP+k,2)}\nv_pk_add_f32 {vr(SM,2)}, {vr(SM,2)}, {vr(EM+k,2)}")
    a(f"v_add_f32 v{SP}, v{SP}, v{SP+1}\nv_add_f32 v{SM}, v{SM}, v{SM+1}")
    if not isq:
        a(f"v_rcp_f32 v{SP}, v{SP}\nv_rcp_f32 v{SM}, v{SM}")
        a(f"v_cvt_pk_bf16_f32 v{PK+18}, v{U+9}, v{Wr+9}")
        for k in range(0, 18, 2): a(f"v_pk_mul_f32 {vr(EP+k,2)}, {vr(EP+k,2)}, {vr(SP,2)} op_sel_hi:[1,0]")
        for k in range(0, 18, 2): a(f"v_pk_mul_f32 {vr(EM+k,2)}, {vr(EM+k,2)}, {vr(SM,2)} op_sel_hi:[1,0]")
        for k in range(18):
            a(f"v_cvt_pk_bf16_f32 v{PK+k}, v{EP+2*k}, v{EP+2*k+1}")
            if k % 4 == 3: a(f"ds_write_b128 v12, {vr(PK+k-3,4)} offset:{(k-3)*4}")
        a(f"ds_write_b128 v12, {vr(PK+16,4)} offset:64")
    else:
        def dst(k): return PK + (k if k >= 16 else 4*((k & 7) >> 1) + 2*(k >> 3) + (k & 1))
        a(f"v_rcp_f32 v{SM}, v{SM}")
        a(f"v_mul_f32 v102, s{sC}, v{U+9}")
        a(f"v_mul_f32 v{SM}, v{SM}, v{SP}")
        a(f"v_exp_f32_e64 v102, -v102")
        a(f"v_mul_f32 v{SP}, 0x358637bd, v{SP}")
        for k in range(0, 18, 2): a(f"v_pk_mul_f32 {vr(EM+k,2)}, {vr(EM+k,2)}, {vr(SM,2)} op_sel_hi:[1,0]")
        a("v_add_f32 v102, 1.0, v102\nv_rcp_f32 v102, v102")
        for k in range(18): a(f"v_cvt_pk_bf16_f32 v{dst(k)}, v{EP+2*k}, v{EP+2*k+1}")
        a("v_sub_f32 v103, 1.0, v102")

def kq_pass(a, base_main, part, bars):
    BUF = 40
    def rd(kk):
        b = BUF + 12*(kk % 3)
        if kk in bars: a("s_barrier")
        a(f"ds_read_b128 {vr(b,4)}, v10 offset:{kk*2048}", tag=("w", kk))
        a(f"ds_read_b128 {vr(b+4,4)}, v10 offset:{kk*2048+1024}", tag=("w", kk))
        a(f"ds_read_b128 {vr(b+8,4)}, v11 offset:{kk*1024+part*512}", tag=("w", kk))
    rd(0); rd(1)
    for kk in range(18):
        if kk + 2 < 18: rd(kk + 2)
        a.wait(lg=("w", kk))
        if kk == 17: a("s_barrier")
        b = BUF + 12*(kk % 3)
        for t in range(3):
            for rb in range(2):
                d = 16 + 12*rb + 4*t
                mfma16(a, d, vr(b+4*t, 4), xreg(kk, rb), "0" if kk == 0 else vr(d, 4))

def gen(diag=False, nlines=128, D=2):
    a = G(diag)
    a(f"""s_cmp_ge_u32 s2, 256
s_cbranch_scc1 L_end
s_load_dwordx2 s[{X}:{X+1}], s[0:1], 0
s_load_dwordx2 s[{W}:{W+1}], s[0:1], 48
s_load_dwordx2 s[{PHI}:{PHI+1}], s[0:1], 56
s_load_dwordx2 s[{WS}:{WS+1}], s[0:1], 96
s_load_dwordx4 s[44:47], s[0:1], 24
s_load_dwordx8 s[48:55], s[0:1], 64""")
    if diag: a("s_memtime s[96:97]\ns_memrealtime s[94:95]\nv_mov_b32 v15, 0")
    a(f"""v_lshrrev_b32 v1, 6, v0
v_and_b32 v0, 63, v0
v_readfirstlane_b32 s{sW}, v1
s_lshr_b32 s{sSLOT}, s2, 3
s_getpc_b64 s[84:85]
s_lshl_b32 s3, s{sSLOT}, 3
v_and_b32 v1, 15, v0
v_lshrrev_b32 v2, 4, v0
s_add_u32 s3, s3, s{sW}
s_min_u32 s3, s3, {nlines-1}
s_lshl_b32 s3, s3, 7
v_mov_b32 v4, s3
global_load_dword v13, v4, s[84:85]
v_lshlrev_b32 v3, 4, v0
s_mov_b32 s93, s{sW}
s_and_b32 s{sI}, s2, 3
s_lshl_b32 s{sI}, s{sI}, 2
s_and_b32 s3, s{sSLOT}, 3
s_add_u32 s{sI}, s{sI}, s3
s_lshl_b32 s{sJ}, s2, 1
s_and_b32 s{sJ}, s{sJ}, 8
s_lshr_b32 s3, s{sSLOT}, 2
s_add_u32 s{sJ}, s{sJ}, s3
s_and_b32 s{RC}, s3, 6
s_mov_b32 s{WS+2}, {WS_BYTES}
s_mov_b32 s{WS+3}, 0x20000
s_cmp_ge_u32 s{sW}, 4
s_cbranch_scc0 L_A""")
    def rc_table():
        for c in range(1, 9):
            a(f"s_add_u32 s{RC+c}, s{RC}, {c}")
            if c >= 3: a(f"s_sub_u32 s3, s{RC+c}, 9\ns_min_u32 s{RC+c}, s{RC+c}, s3")
    def xread_bases():
        a(f"""v_lshrrev_b32 v8, 1, v1
v_xor_b32 v8, v8, v2
v_lshlrev_b32 v8, 4, v8
v_lshl_add_u32 v8, v1, 7, v8
s_lshl_b32 s3, s{sW}, 12
v_add_u32 v8, s3, v8
v_xor_b32 v9, 64, v8""")
    sv0 = (list(a.vm), list(a.lg))
    a(f"""s_and_b32 s{sW}, s{sW}, 3
s_mov_b32 s{X+2}, {2048*1152}
s_mov_b32 s{X+3}, 0x20000
s_lshl_b32 s3, s{sI}, 2
s_add_u32 s83, s3, s{sW}
s_mul_i32 s3, s83, 1152
v_lshrrev_b32 v4, 3, v0
v_mul_u32_u24 v4, {64*1152}, v4
v_and_b32 v5, 7, v0
v_xor_b32 v5, v5, v2
v_lshlrev_b32 v5, 4, v5
v_add3_u32 v16, v4, v5, s3
v_xor_b32 v17, 64, v16
v_add_u32 v18, {16*73728-2048}, v16
v_add_u32 v19, {24*73728-3072}, v17
v_add_u32 v17, {8*73728-1024}, v17
s_lshl_b32 s84, s{sW}, 12""")
    rc_table(); xread_bases()
    a("s_waitcnt lgkmcnt(0)")
    a.stamp()
    for c in range(9):
        a(f"s_add_u32 m0, s84, {c*16384}\ns_lshl_b32 s3, s{RC+c}, 7")
        for n in range(4):
            a(f"buffer_load_dwordx4 v{16+n}, {srd(X)}, s3 offen offset:{n*1024} lds", tag=("x", c))
        if c == 1: a("s_barrier")
        if c >= D:
            a.wait(vm=("x", c-D)); xreads(a, c-D)
    for c in range(9-D, 7):
        a.wait(vm=("x", c)); xreads(a, c)
    a("s_waitcnt lgkmcnt(0)")
    a.stamp()
    a("s_barrier")
    a(f"""v_mov_b32 v10, v3
v_and_b32 v4, 1, v1
v_lshlrev_b32 v5, 1, v4
v_xor_b32 v5, v5, v2
v_lshlrev_b32 v5, 6, v5
v_lshl_add_u32 v5, v4, 8, v5
v_lshrrev_b32 v4, 2, v1
v_lshl_add_u32 v5, v4, 4, v5
v_add_u32 v11, {WX}, v5
v_and_b32 v4, 31, v0
v_mul_u32_u24 v4, 160, v4
v_lshrrev_b32 v5, 5, v0
v_mul_u32_u24 v5, 80, v5
s_mul_i32 s3, s{sW}, {32*160}
s_add_u32 s3, s3, {PH}
v_add3_u32 v12, v4, v5, s3
v_mov_b32 v95, 0x3f80
s_mov_b32 s{sC}, 0x3fb8aa3b
s_mov_b32 s{sC+1}, 0x3fb8aa3b""")
    a("s_barrier")
    a.stamp()
    for c in (7, 8):
        a.wait(vm=("x", c)); xreads(a, c)
    a("s_waitcnt lgkmcnt(0)")
    a.stamp()
    kq_pass(a, WK, 0, bars=(0, 4, 10))
    a.stamp()
    softmax(a, False)
    a(f"v_add_u32 v10, {WQ}, v3\ns_waitcnt lgkmcnt(0)")
    a.stamp()
    kq_pass(a, WQ, 1, bars=(0,))
    a.stamp()
    softmax(a, True)
    a.stamp()
    SEL, LD, RA, KA, O0, O1 = 104, 112, 160, 176, 16, 32
    a(f"""v_and_b32 v4, 7, v1
v_lshrrev_b32 v5, 1, v4
v_and_b32 v4, 1, v4
v_lshlrev_b32 v4, 4, v4
v_lshlrev_b32 v4, v4, v95""")
    for k in range(4):
        a(f"v_cmp_eq_u32 vcc, {k}, v5\nv_cndmask_b32 v{SEL+k}, 0, v4, vcc")
    a(f"""v_mul_u32_u24 v8, 3072, v2
v_lshl_add_u32 v8, v1, 4, v8
s_mul_i32 s3, s{sW}, 768
v_add_u32 v8, s3, v8
v_and_b32 v9, 1, v2
v_lshlrev_b32 v9, 3, v9
v_lshl_add_u32 v9, v1, 4, v9
s_add_u32 s3, s3, {KVI}
v_add_u32 v9, s3, v9
s_mul_i32 s84, s{sJ}, 49152
s_add_u32 s84, s84, {PART}
s_add_u32 s85, s84, 12288
s_add_u32 s86, s84, 24576
s_add_u32 s90, s84, 36864
v_and_b32 v4, 3, v0
v_bfe_u32 v5, v0, 3, 2
v_lshl_add_u32 v4, v5, 2, v4
v_lshrrev_b32 v5, 5, v0
v_mul_u32_u24 v5, 1440, v5
v_add_u32 v5, {KVI}, v5
v_lshl_add_u32 v10, v4, 4, v5
v_lshl_add_u32 v11, v4, 3, v5""")
    for k in range(36): a(f"v_mov_b32 v{KA+k}, 0")
    a(f"""v_and_b32 v4, 1, v2
v_mul_u32_u24 v4, 18432, v4
v_lshl_add_u32 v4, v1, 4, v4
v_lshrrev_b32 v5, 5, v0
v_lshl_add_u32 v12, v5, 9, v4
v_lshl_add_u32 v13, v5, 2, v4
s_mul_i32 s91, s83, 36864
s_add_u32 s91, s91, {OM}
s_lshr_b32 s3, s{sJ}, 1
s_lshl_b32 s3, s3, 8
s_add_u32 s92, s91, s3
s_and_b32 s3, s{sJ}, 1
s_lshl_b32 s3, s3, 3
s_add_u32 s92, s92, s3
s_add_u32 s92, s92, 16384
s_lshl_b32 s3, s{sJ}, 10
s_add_u32 s91, s91, s3
s_lshl_b32 s3, s{sJ}, 8
s_add_u32 s3, s3, {cnt_off(1)}""")
    a.poll(WS, None, "s3", 16)
    a.stamp()
    a("s_setprio 2")
    so = ["s84", "s85", "s86", "s90"]
    for st in range(4):
        for nu in range(3):
            a(f"buffer_load_dwordx4 {vr(LD+12*st+4*nu,4)}, v8, {srd(WS)}, {so[st]} offen offset:{nu*256} sc1", tag=("p", st))
    for st in range(4):
        a.wait(vm=("p", st))
        for nu in range(3):
            mfma16(a, RA+4*nu, vr(SEL, 4), vr(LD+12*st+4*nu, 4), "0" if st == 0 else vr(RA+4*nu, 4))
    for nu in range(3):
        a(f"v_cvt_pk_bf16_f32 v{RA+4*nu}, v{RA+4*nu}, v{RA+4*nu+1}\nv_cvt_pk_bf16_f32 v{RA+4*nu+1}, v{RA+4*nu+2}, v{RA+4*nu+3}")
        a(f"ds_write_b64 v9, {vr(RA+4*nu,2)} offset:{nu*256}")
    a.lds_arrive(5); a.lds_wait(5)
    a.stamp()
    a.exec_(0x000000F00000000F)
    for c in range(4): a(f"ds_read_b128 {vr(KA+18+4*c,4)}, v10 offset:{c*320+256}", tag=("k1", c))
    a(f"ds_read_b64 {vr(KA+34,2)}, v11 offset:{1280+128}", tag=("k1", 4))
    a.exec_(0xF0F0F0F00F0F0F0F)
    for c in range(4): a(f"ds_read_b128 {vr(KA+4*c,4)}, v10 offset:{c*320}", tag=("k0", c))
    a(f"ds_read_b64 {vr(KA+16,2)}, v11 offset:1280", tag=("k0", 4))
    a.full()
    for t, O in ((1, O1), (0, O0)):
        for c in range(4):
            a.wait(lg=(f"k{t}", c))
            a(f"v_mfma_f32_32x32x16_bf16 {vr(O,16)}, {vr(KA+18*t+4*c,4)}, {vr(76+4*c,4)}, {'0' if c == 0 else vr(O,16)}")
        a.wait(lg=(f"k{t}", 4))
        a(f"v_mfma_f32_32x32x8_bf16 {vr(O,16)}, {vr(KA+18*t+16,2)}, {vr(92,2)}, {vr(O,16)}")
    a(f"""v_add_f32 v98, v98, v{O1+2}
v_rcp_f32 v98, v98
v_lshlrev_b32 v14, 2, v0
v_mul_f32 v98, v98, v103
v_pk_mul_f32 {vr(O1,2)}, {vr(O1,2)}, v[98:99] op_sel_hi:[1,0]
v_cvt_pk_bf16_f32 v{O1}, v{O1}, v{O1+1}
buffer_store_dword v{O1}, v13, {srd(WS)}, s92 offen sc1""")
    for c2 in range(2):
        o = O0 + 8*c2
        for k in range(0, 8, 2): a(f"v_pk_mul_f32 {vr(o+k,2)}, {vr(o+k,2)}, v[98:99] op_sel_hi:[1,0]")
        d = 48 + 4*c2
        a(f"""v_cvt_pk_bf16_f32 v{d}, v{o}, v{o+2}
v_cvt_pk_bf16_f32 v{d+1}, v{o+4}, v{o+6}
v_cvt_pk_bf16_f32 v{d+2}, v{o+1}, v{o+3}
v_cvt_pk_bf16_f32 v{d+3}, v{o+5}, v{o+7}
buffer_store_dwordx4 {vr(d,4)}, v12, {srd(WS)}, s91 offen offset:{c2*256} sc1""")
    a(f"""s_cmp_lg_u32 s{sJ}, 0
s_cbranch_scc1 L_nog
s_lshl_b32 s3, s83, 7
s_add_u32 s3, s3, {GATE}""")
    a.exec_(0xFFFFFFFF)
    a(f"buffer_store_dword v102, v14, {srd(WS)}, s3 offen sc1")
    a.full()
    a(f"L_nog:\ns_lshl_b32 s3, s{sI}, 8\ns_add_u32 s3, s3, {cnt_off(3)}")
    a.stamp()
    a("s_waitcnt vmcnt(0)")
    E, _ = a.signal(3, "s3")
    a(f"{E}:")
    a.stamp_end()
    a("s_endpgm")
    nB = a.nst
    a.vm, a.lg = sv0; a.nst = 0
    PZ = 2560 + 1456
    a(f"""L_A:
s_mov_b32 s{W+2}, {576*3456}
s_mov_b32 s{W+3}, 0x20000
s_mov_b32 s{PHI+2}, {32*648}
s_mov_b32 s{PHI+3}, 0x20000
s_lshl_b32 s83, s{sI}, 2
s_add_u32 s83, s83, s{sW}
s_lshl_b32 s84, s{sW}, 12
s_add_u32 s84, s84, {PS}
s_cmp_ge_u32 s83, 18
s_cselect_b32 s85, 1, 0
s_cmp_ge_u32 s83, 36
s_cselect_b32 s85, 2, s85
s_mul_i32 s3, s85, 18
s_sub_u32 s86, s83, s3
v_mul_u32_u24 v4, 52, v0
v_lshrrev_b32 v4, 8, v4
v_mul_u32_u24 v5, {3456-80}, v4
v_add_u32 v16, v5, v3
v_mul_u32_u24 v4, 26, v0
v_lshrrev_b32 v4, 8, v4
v_sub_u32 v4, v0, v4
v_lshlrev_b32 v17, 2, v4
s_mul_i32 s90, s86, {32*3456}
s_mul_i32 s3, s85, 1152
s_add_u32 s90, s90, s3
s_mul_i32 s3, s{sJ}, 72
s_add_u32 s90, s90, s3
s_mul_i32 s91, s{sJ}, 1296
s_mul_i32 s92, s{sJ}, {WPJ}
s_add_u32 s92, s92, {WP}
v_mov_b32 v20, 0
v_mov_b32 v21, 0
v_mov_b32 v22, 0
v_mov_b32 v23, 0
v_and_b32 v4, 7, v0
v_lshlrev_b32 v4, 2, v4
v_add_u32 v4, {LC}, v4
ds_write_b32 v4, v20
v_mov_b32 v18, s84
ds_write_b128 v18, v[20:23] offset:{PZ}
s_cmp_ge_u32 s83, 54
s_waitcnt lgkmcnt(0)
s_cbranch_scc1 L_nojob""")
    a.stamp()
    for n in range(3):
        a(f"s_add_u32 m0, s84, {960*n}")
        if n == 2: a.exec_((1 << 40) - 1)
        a(f"buffer_load_dwordx4 v16, {srd(W)}, s90 offen lds")
        if n < 2: a(f"s_add_u32 s90, s90, {12*3456}")
    a.full()
    a("s_cmp_eq_u32 s85, 2\ns_cbranch_scc1 L_vjob")
    for n in range(6):
        a(f"s_add_u32 m0, s84, {2560+240*n}\ns_nop 0\nbuffer_load_dword v17, {srd(PHI)}, s91 offen lds")
        if n < 5: a("s_add_u32 s91, s91, 216")
    a(f"""s_barrier
v_mov_b32 v24, v3
v_add_u32 v25, 1024, v3
s_cmp_eq_u32 s85, 0
s_cselect_b32 s90, {WQ}, {WK}
s_cselect_b32 s91, 512, 0
v_lshlrev_b32 v26, 6, v2
s_branch L_job
L_vjob:
s_barrier
v_add_u32 v4, s84, v3
ds_write_b128 v4, v[20:23] offset:2560""")
    a.exec_((1 << 27) - 1)
    a("ds_write_b128 v4, v[20:23] offset:3584")
    a.exec_((1 << 36) - 1)
    a(f"""v_cmp_le_u32 vcc, 18, v0
v_mul_u32_u24 v4, 42, v0
v_mov_b32 v6, 0x3f80
v_cndmask_b32 v5, 0, 36, vcc
v_sub_u32 v4, v4, v5
v_add_u32 v4, s84, v4
ds_write_b16 v4, v6 offset:2560""")
    a.full()
    a(f"""v_lshrrev_b32 v4, 3, v1
v_lshlrev_b32 v4, 10, v4
v_lshl_add_u32 v4, v2, 8, v4
v_bfe_u32 v5, v1, 2, 1
v_lshl_add_u32 v4, v5, 7, v4
v_and_b32 v5, 3, v1
v_lshl_add_u32 v24, v5, 4, v4
v_add_u32 v25, 64, v24
s_mov_b32 s90, {WV}
s_mov_b32 s91, 256
v_xor_b32 v26, 2, v2
v_lshlrev_b32 v26, 6, v26
L_job:
v_lshrrev_b32 v4, 2, v1
v_lshl_add_u32 v26, v4, 5, v26
v_and_b32 v5, 1, v1
v_lshl_add_u32 v26, v5, 4, v26
s_lshl_b32 s3, s86, 11
s_add_u32 s90, s90, s3
s_add_u32 s90, s90, s92
s_lshl_b32 s3, s86, 10
s_add_u32 s91, s91, s3
s_add_u32 s91, s91, s92
s_add_u32 s91, s91, {WX}
v_and_b32 v5, 3, v1
v_lshl_add_u32 v5, v4, 3, v5
v_mul_u32_u24 v5, 80, v5
v_add_u32 v28, s84, v5
v_lshl_add_u32 v27, v2, 4, v28
v_lshl_add_u32 v5, v2, 3, v4
v_mul_u32_u24 v5, 40, v5
s_add_u32 s3, s84, 2560
v_add_u32 v5, s3, v5
v_and_b32 v6, 1, v0
v_lshl_add_u32 v6, v6, 4, v5
v_add_u32 v5, 32, v5
v_add_u32 v18, {PZ}, v18""")
    def dd(l, h): return 8*(l >> 4) + 4*h + ((l >> 2) & 3)
    specs = [(30, 6, 0, lambda l: (dd(l, 0) >= 18) == bool((l & 3) >> 1)), (31, 6, 160, lambda l: (dd(l, 1) >= 18) == bool((l & 3) >> 1)),
             (32, 6, 1280, lambda l: l < 16 and ((l & 3) >> 1) == 1),
             (33, 5, 0, lambda l: (dd(l, 0) >= 18) == bool(l & 1)), (34, 5, 160, lambda l: (dd(l, 1) >= 18) == bool(l & 1)),
             (35, 5, 1280, lambda l: l < 16 and (l & 1) == 1)]
    for d, s_, add, f in specs: a(f"v_mov_b32 v{d}, v18")
    for d, s_, add, f in specs:
        a.exec_(mask(f)); a(f"v_add_u32 v{d}, {add}, v{s_}")
    a.full()
    AO, A2, PB, PB2, AC, OT = 40, 48, 52, 64, 72, 96
    a("s_waitcnt vmcnt(0) lgkmcnt(0)")
    a.stamp()
    for tb in range(2): a(f"ds_read_b128 {vr(AO+4*tb,4)}, v27 offset:{320*tb}", tag="a")
    for t in range(3):
        r0, of = (30, 8*t) if t < 2 else (33, 0)
        a(f"ds_read_b64_tr_b16 {vr(PB+4*t,2)}, v{r0} offset:{of}", tag=("b", t))
        a(f"ds_read_b64_tr_b16 {vr(PB+4*t+2,2)}, v{r0+1} offset:{of}", tag=("b", t))
    for tb in range(2): a(f"ds_read_b64 {vr(A2+2*tb,2)}, v28 offset:{320*tb+64}", tag="a2")
    for t in range(3):
        r0, of = (32, 8*t) if t < 2 else (35, 0)
        a(f"ds_read_b64_tr_b16 {vr(PB2+2*t,2)}, v{r0} offset:{of}", tag=("b2", t))
    for t in range(3):
        a.wait(lg=("b", t))
        for tb in range(2): mfma16(a, AC+8*t+4*tb, vr(AO+4*tb, 4), vr(PB+4*t, 4), "0")
    for t in range(3):
        a.wait(lg=("b2", t))
        for tb in range(2):
            d = AC+8*t+4*tb
            a(f"v_mfma_f32_16x16x16_bf16 {vr(d,4)}, {vr(A2+2*tb,2)}, {vr(PB2+2*t,2)}, {vr(d,4)}")
    for t in range(3):
        for k in range(4): a(f"v_cvt_pk_bf16_f32 v{OT+4*t+k}, v{AC+8*t+2*k}, v{AC+8*t+2*k+1}")
        if t == 2: a.exec_(0x0033003300330033)
        a(f"buffer_store_dwordx4 {vr(OT+4*t,4)}, v{24+t}, {srd(WS)}, {'s90' if t < 2 else 's91'} offen sc1")
    a.full()
    a("s_branch L_jobdone")
    a(f"""L_nojob:
s_barrier
s_cmp_eq_u32 s83, 54
s_cbranch_scc0 L_nogate
s_mov_b32 s{GW}, s50
s_mov_b32 s{GW+1}, s51
s_mov_b32 s{GW+2}, 1152
s_mov_b32 s{GW+3}, 0x20000
v_lshrrev_b32 v4, 2, v1
v_xor_b32 v4, 2, v4
v_lshlrev_b32 v4, 4, v4
v_lshl_add_u32 v4, v2, 6, v4
v_lshlrev_b32 v5, 4, v1
v_lshl_add_u32 v5, v2, 10, v5
s_add_u32 s91, s92, {WX+768}""")
    for g5 in range(5): a(f"buffer_load_dwordx4 {vr(40+4*g5,4)}, v4, {srd(GW)}, 0 offen offset:{256*g5}")
    a("s_waitcnt vmcnt(0)")
    for g5 in range(5):
        if g5 == 4: a.exec_(0xFFFFFFFF)
        a(f"buffer_store_dwordx4 {vr(40+4*g5,4)}, v5, {srd(WS)}, s91 offen sc1")
        if g5 < 4: a("s_add_u32 s91, s91, 4096")
    a.full()
    a(f"""s_branch L_jobdone
L_nogate:
s_cmp_eq_u32 s83, 63
s_cbranch_scc0 L_jobdone
s_cmp_eq_u32 s{sJ}, 0
s_cbranch_scc0 L_jobdone
s_mov_b32 s{DBG}, s54
s_mov_b32 s{DBG+1}, s55
s_mov_b32 s{DBG+2}, 256
s_mov_b32 s{DBG+3}, 0x20000
v_lshlrev_b32 v4, 8, v0
v_mov_b32 v5, 1
buffer_store_dword v20, v4, {srd(WS)}, 0 offen sc1
s_waitcnt vmcnt(0)""")
    a.exec_(1)
    a(f"buffer_store_dword v5, off, {srd(DBG)}, 0 sc1")
    a.full()
    a(f"""L_jobdone:
s_mov_b32 s{DBG}, s54
s_mov_b32 s{DBG+1}, s55
s_mov_b32 s{DBG+2}, 256
s_mov_b32 s{DBG+3}, 0x20000
s_cmp_lg_u32 s{sW}, 0
s_cbranch_scc1 L_nord
buffer_load_dword v7, off, {srd(DBG)}, 0 sc1
L_nord:""")
    if diag: a.nst = 2
    a.stamp()
    rc_table(); xread_bases()
    a(f"s_lshl_b32 s84, s{sW}, 10\ns_lshl_b32 s85, s{sW}, 9\ns_add_u32 s86, s92, s84\ns_add_u32 s90, s92, s85")
    for c in range(9):
        a(f"s_lshl_b32 s3, s{RC+c}, 12\ns_add_u32 s{T1+c}, s3, s86\ns_lshl_b32 s3, s{RC+c}, 11\ns_add_u32 s{T2+c}, s3, s90")
    a(f"""v_add_u32 v10, {WV}, v3
v_add_u32 v11, {WX}, v3
v_add_u32 v12, {WQ}, v3
s_lshl_b32 s91, s{sJ}, 8
s_waitcnt vmcnt(0)""")
    a.stamp()
    E, sv = a.signal(0, "s91", pre=lambda: a.poll(DBG, None, "0", 1, first=False))
    a(f"{E}:")
    a.stamp()
    a("s_barrier")
    for c in range(7): xreads(a, c)
    E = a.lab("c0")
    a(f"s_cmp_lg_u32 s{sW}, 0\ns_cbranch_scc1 {E}")
    a.poll(WS, None, "s91", 16)
    a(f"{E}:\ns_waitcnt lgkmcnt(0)")
    a.reset_counts()
    a.stamp()
    a("s_barrier")
    def s1(c):
        a(f"s_add_u32 m0, s84, {WK+c*4096}\ns_nop 0\nbuffer_load_dwordx4 v3, {srd(WS)}, s{T1+c} offen sc1 lds", tag=("s1", c))
        a(f"s_add_u32 m0, s85, {WX+c*2048}\ns_mov_b32 exec_hi, 0\nbuffer_load_dwordx4 v11, {srd(WS)}, s{T2+c} offen sc1 lds\ns_mov_b32 exec_hi, -1", tag=("s1", c))
    def s2(c): a(f"s_add_u32 m0, s84, {WV+c*4096}\ns_nop 0\nbuffer_load_dwordx4 v10, {srd(WS)}, s{T1+c} offen sc1 lds", tag="wv")
    def s3(c): a(f"s_add_u32 m0, s84, {WQ+c*4096}\ns_nop 0\nbuffer_load_dwordx4 v12, {srd(WS)}, s{T1+c} offen sc1 lds", tag="wq")
    for c in range(6): s1(c)
    a.wait(vm=("s1", 1))
    a("s_barrier")
    a.stamp()
    xreads(a, 7); xreads(a, 8)
    for c in range(6, 9): s1(c)
    for c in range(4): s2(c)
    a.wait(vm=("s1", 4)); a("s_waitcnt lgkmcnt(0)")
    a("s_barrier")
    for c in range(4, 9): s2(c)
    for c in range(3): s3(c)
    a.wait(vm=("s1", 8))
    a("s_barrier")
    for c in range(3, 9): s3(c)
    a(f"""v_lshrrev_b32 v4, 2, v0
v_mul_u32_u24 v4, 160, v4
s_and_b32 s3, s{sW}, 1
s_mul_i32 s86, s3, 80
s_add_u32 s86, s86, {PH}
v_add_u32 v4, s86, v4
v_and_b32 v5, 3, v0
v_lshl_add_u32 v8, v5, 3, v4
v_add_u32 v9, 64, v4
s_lshl_b32 s86, s3, 10
s_add_u32 s86, s86, {VF}
v_add_u32 v11, s86, v3
s_lshl_b32 s86, s{sW}, 11
s_add_u32 s86, s86, {VF}
v_add_u32 v12, s86, v3
s_mul_i32 s86, s3, 1440
s_lshr_b32 s3, s{sW}, 1
s_lshl_b32 s3, s3, 4
v_add_u32 v4, s3, v1
v_mul_u32_u24 v5, 320, v2
v_lshl_add_u32 v13, v4, 4, v5
v_lshlrev_b32 v14, 3, v4
s_lshl_b32 s3, s{sJ}, 4
s_add_u32 s3, s3, s{sI}
s_mul_i32 s3, s3, 3072
s_add_u32 s86, s86, s3
s_add_u32 s86, s86, {PART}""")
    R32 = 104
    a("""v_lshrrev_b32 v4, 1, v1
v_cvt_f32_u32 v4, v4
v_and_b32 v5, 1, v1
v_cvt_f32_u32 v5, v5
v_mul_f32 v5, 0xbe800000, v5
v_lshlrev_b32 v6, 2, v2
v_cvt_f32_u32 v6, v6""")
    for jt in (1, 0):
        if jt == 1: a("v_add_f32 v7, 0x41000000, v4")
        else:
            a("v_mov_b32 v7, v4")
            a.exec_(0x0002000200020002); a("v_mov_b32 v7, 0x41800000\nv_mov_b32 v5, 0"); a.full()
        a("v_mul_f32 v7, 0x3d000000, v7\nv_fma_f32 v16, v7, v6, v5")
        import struct
        fh = lambda f: hex(struct.unpack("<I", struct.pack("<f", f))[0])
        for jj in range(1, 8): a(f"v_fmamk_f32 v{16+jj}, v7, {fh(16*(jj>>2)+(jj&3))}, v16")
        for jj in range(8): a(f"v_fract_f32 v{16+jj}, v{16+jj}")
        for jj in range(8): a(f"v_cos_f32 v{16+jj}, v{16+jj}")
        for k in range(4): a(f"v_cvt_pk_bf16_f32 v{R32+4*jt+k}, v{16+2*k}, v{17+2*k}")
    a.wait(vm="wv")
    a.stamp()
    a("s_barrier")
    a.stamp()
    def rdv(kk):
        b = 40 + 8*(kk % 4)
        for t in range(2): a(f"ds_read_b128 {vr(b+4*t,4)}, v10 offset:{kk*2048+t*1024}", tag=("w", kk))
    rdv(0); rdv(1); rdv(2)
    for kk in range(18):
        if kk + 3 < 18: rdv(kk + 3)
        a.wait(lg=("w", kk))
        b = 40 + 8*(kk % 4)
        for t in range(2):
            for rb in range(2):
                d = 16 + 8*t + 4*rb
                mfma16(a, d, xreg(kk, rb), vr(b+4*t, 4), "0" if kk == 0 else vr(d, 4))
    for t in range(2):
        for k in range(4): a(f"v_cvt_pk_bf16_f32 v{32+4*t+k}, v{16+8*t+2*k}, v{17+8*t+2*k}")
        a(f"ds_write_b128 v12, {vr(32+4*t,4)} offset:{t*1024}")
    a("s_waitcnt vmcnt(0) lgkmcnt(0)")
    a.stamp()
    a("s_barrier\ns_setprio 2")
    a.stamp()
    def kvjob(nx):
        for ks in range(4):
            b = 40 + 16*ks
            if nx:
                for h in range(2): a(f"ds_read_b64_tr_b16 {vr(b+12+2*h,2)}, v9 offset:{ks*5120+h*2560+8}", tag=("j", ks))
            else: a(f"ds_read_b128 {vr(b+12,4)}, v11 offset:{ks*2048}", tag=("j", ks))
            for t in range(3):
                for h in range(2):
                    r, of = (8, 32*t) if t < 2 else (9, 0)
                    a(f"ds_read_b64_tr_b16 {vr(b+4*t+2*h,2)}, v{r} offset:{ks*5120+h*2560+of}", tag=("j", ks))
            if ks >= 1:
                a.wait(lg=("j", ks-1)); kvm(ks-1)
        a.wait(lg=("j", 3)); kvm(3)
    def kvm(ks):
        b = 40 + 16*ks
        for t in range(3): mfma16(a, 16+4*t, vr(b+4*t, 4), vr(b+12, 4), "0" if ks == 0 else vr(16+4*t, 4))
    a(f"s_cmp_ge_u32 s{sW}, 2\ns_cbranch_scc1 L_nx")
    kvjob(0)
    a("s_mov_b32 s90, -1\ns_mov_b32 s3, 0xffff\ns_branch L_kvd\nL_nx:")
    kvjob(1)
    a("s_mov_b32 s90, 0x000f000f\ns_mov_b32 s3, 15\nL_kvd:\ns_nop 4")
    for k in range(6): a(f"v_cvt_pk_bf16_f32 v{28+k}, v{16+2*k}, v{17+2*k}")
    a(f"""s_mov_b32 exec_lo, s90
s_mov_b32 exec_hi, s90
buffer_store_dwordx4 v[28:31], v13, {srd(WS)}, s86 offen sc1
s_mov_b32 exec_lo, s3
s_mov_b32 exec_hi, 0
buffer_store_dwordx2 v[32:33], v14, {srd(WS)}, s86 offen offset:1280 sc1""", tag="pst")
    a.full()
    a.stamp()
    a(f"""s_cmp_ge_u32 s{sJ}, 8
s_cselect_b32 s{HID}, s46, s44
s_cselect_b32 s{HID+1}, s47, s45
s_mov_b32 s{HID+2}, {576*1152}
s_mov_b32 s{HID+3}, 0x20000
s_and_b32 s3, s{sJ}, 7
s_mul_i32 s86, s3, {36*1152}
s_mul_i32 s3, s{sW}, {8*1152}
s_add_u32 s3, s3, s86
v_lshrrev_b32 v4, 3, v0
v_mul_u32_u24 v5, 1152, v4
v_and_b32 v6, 7, v0
v_xor_b32 v7, v6, v2
v_lshlrev_b32 v7, 4, v7
v_add3_u32 v8, v5, v7, s3
s_and_b32 s3, s{sW}, 1
s_lshl_b32 s3, s3, 6
v_xor_b32 v8, s3, v8
v_add_u32 v4, s{RC}, v4
v_subrev_u32 v5, 9, v4
v_min_u32 v4, v4, v5
v_lshlrev_b32 v6, 4, v6
v_lshl_add_u32 v9, v4, 7, v6
s_add_u32 s3, s{sW}, 32
s_mul_i32 s3, s3, 1152
s_add_u32 s86, s86, s3
s_mul_i32 s90, s{sW}, 1184
s_add_u32 m0, s90, {HE}
s_lshl_b32 s3, s{RC+8}, 7
buffer_load_dwordx4 v9, {srd(HID)}, s86 offen lds
s_add_u32 s86, s86, s3
s_add_u32 m0, s90, {HE+1024}""", tag="h")
    a.exec_(0xFF)
    a(f"buffer_load_dwordx4 v6, {srd(HID)}, s86 offen lds", tag="h")
    a.full()
    for c in range(9):
        a(f"s_add_u32 m0, s84, {HI+c*4096}\ns_lshl_b32 s3, s{RC+c}, 7\nbuffer_load_dwordx4 v8, {srd(HID)}, s3 offen lds", tag="h")
    a(f"s_add_u32 s3, s91, {cnt_off(1)}")
    a.wait(vm="pst")
    E, sv = a.signal(1, "s3")
    a(f"{E}:\ns_setprio 0")
    a.vm, a.lg = sv
    a.stamp()
    a(f"""s_and_b32 s65, s{sSLOT}, 7
s_and_b32 s66, s2, 7
s_lshl_b32 s66, s66, 1
s_bfe_u32 s3, s{sSLOT}, 0x10003
s_add_u32 s66, s66, s3
s_sub_u32 s67, 32, s66
s_cmp_eq_u32 s66, 0
s_cselect_b32 s67, 16, s67
s_cmp_ge_u32 s{sSLOT}, 16
s_cselect_b32 s67, s67, s66
s_mov_b32 s{WO}, s48
s_mov_b32 s{WO+1}, s49
s_mov_b32 s{WO+2}, {576*1152}
s_mov_b32 s{WO+3}, 0x20000
v_mul_u32_u24 v13, 57, v0
v_lshrrev_b32 v13, 9, v13
v_mul_u32_u24 v4, {1152-144}, v13
v_add_u32 v14, v4, v3
s_mul_i32 s68, s65, 144
s_mul_i32 s3, s{sW}, {7*1152}
s_add_u32 s68, s68, s3
s_mul_i32 s69, s{sW}, 1008""")
    def wo(n):
        a(f"s_add_u32 m0, s69, {WOI+n*4032}\ns_add_u32 s3, s68, {n*28*1152}\nbuffer_load_dwordx4 v14, {srd(WO)}, s3 offen lds", tag="wo")
    for n in range(6): wo(n)
    a(f"""v_lshrrev_b32 v8, 1, v1
v_xor_b32 v8, v8, v2
v_lshlrev_b32 v8, 4, v8
v_lshl_add_u32 v8, v1, 7, v8
v_xor_b32 v9, 64, v8
v_and_b32 v4, 3, v1
v_mul_u32_u24 v4, 1184, v4
v_lshl_add_u32 v4, v2, 4, v4
v_add_u32 v10, {HE}, v4
s_mul_i32 s3, s{sW}, 3072
s_add_u32 s3, s3, {HF}
v_add_u32 v11, s3, v3
s_lshl_b32 s3, s{sW}, 10
s_add_u32 s3, s3, {HF}
v_add_u32 v12, s3, v3""")
    a.wait(vm="h")
    a(f"""s_cmp_eq_u32 s{sJ}, 8
s_cbranch_scc0 L_noj8
s_cmp_eq_u32 s{sW}, 0
s_cbranch_scc0 L_noj8
v_mov_b32 v16, 0xbf803f80
v_mov_b32 v17, 0xbf803f80
v_mov_b32 v18, 0xbf803f80
v_mov_b32 v19, 0xbf803f80
v_lshrrev_b32 v4, 3, v0
v_and_b32 v5, 7, v0
v_lshlrev_b32 v5, 4, v5
v_lshl_add_u32 v4, v4, 12, v5
ds_write_b128 v4, v[16:19] offset:{HI}
ds_write_b128 v5, v[16:19] offset:{HI+32768}
s_waitcnt lgkmcnt(0)
L_noj8:""")
    a.stamp()
    a("s_barrier")
    a.stamp()
    def rdh(kk):
        b = 40 + 12*(kk % 3); c, kp = kk >> 1, kk & 1
        for t in range(2): a(f"ds_read_b128 {vr(b+4*t,4)}, v{8+kp} offset:{HI+c*4096+t*2048}", tag=("w", kk))
        a(f"ds_read_b128 {vr(b+8,4)}, v10 offset:{c*128+kp*64}", tag=("w", kk))
    rdh(0); rdh(1)
    for kk in range(18):
        if kk + 2 < 18: rdh(kk + 2)
        a.wait(lg=("w", kk))
        b = 40 + 12*(kk % 3)
        for t in range(3):
            for rb in range(2):
                d = 16 + 8*t + 4*rb
                mfma16(a, d, xreg(kk, rb), vr(b+4*t, 4), "0" if kk == 0 else vr(d, 4))
    for t in range(3):
        for k in range(4): a(f"v_cvt_pk_bf16_f32 v{40+4*t+k}, v{16+8*t+2*k}, v{17+8*t+2*k}")
        a(f"ds_write_b128 v11, {vr(40+4*t,4)} offset:{t*1024}")
    a.lds_arrive(4)
    a(f"""v_mul_u32_u24 v8, {2*147456}, v2
v_lshl_add_u32 v8, v1, 4, v8
s_mul_i32 s70, s{sI}, 576
s_mul_i32 s3, s{sJ}, 36
s_add_u32 s70, s70, s3
s_lshl_b32 s3, s{sW}, 4
s_add_u32 s70, s70, s3
s_lshl_b32 s70, s70, 4
s_add_u32 s70, s70, {GM}
s_cmp_eq_u32 s{sW}, 2
s_cselect_b32 s90, 0x000f000f, -1""")
    a.stamp()
    a.lds_wait(4)
    a(f"s_cmp_eq_u32 s{sW}, 3\ns_cbranch_scc1 L_nogj")
    for z in range(4): a(f"ds_read_b128 {vr(40+4*z,4)}, v12 offset:{z*3072}", tag=("g", z))
    for jt in range(2):
        for z in range(4):
            a.wait(lg=("g", z))
            mfma16(a, 56+16*jt+4*z, vr(R32+4*jt, 4), vr(40+4*z, 4), "0")
    a("s_mov_b32 exec_lo, s90\ns_mov_b32 exec_hi, s90")
    for jt in range(2):
        for h2 in range(2):
            d = 16 + 8*jt + 4*h2; c = 56 + 16*jt + 2*h2
            a(f"""v_cvt_pk_bf16_f32 v{d}, v{c}, v{c+4}
v_cvt_pk_bf16_f32 v{d+1}, v{c+8}, v{c+12}
v_cvt_pk_bf16_f32 v{d+2}, v{c+1}, v{c+5}
v_cvt_pk_bf16_f32 v{d+3}, v{c+9}, v{c+13}
s_add_u32 s3, s70, {(8*jt+h2)*147456}
buffer_store_dwordx4 {vr(d,4)}, v8, {srd(WS)}, s3 offen sc1""", tag="gst")
    a.full()
    a("L_nogj:")
    a.stamp()
    PF, QF, GB, OB = 56, 72, 88, 56
    a(f"""s_lshr_b32 s71, s{sW}, 1
s_lshl_b32 s71, s71, 5
s_add_u32 s71, s71, s67
s_and_b32 s72, s{sW}, 1
s_lshl_b32 s3, s72, 10
s_add_u32 s3, s3, s71
v_lshl_add_u32 v4, v1, 6, s3
v_cvt_f32_u32 v4, v4
v_mul_f32 v4, 0x3a000000, v4
v_lshlrev_b32 v5, 2, v2
v_cvt_f32_u32 v5, v5
v_mul_f32 v112, v4, v5
s_mov_b32 s3, 0x80008000
s_cmp_ge_u32 s67, 16
s_cselect_b32 s73, s3, 0
s_cmp_ge_u32 s65, 4
s_cselect_b32 s74, s3, 0
s_xor_b32 s75, s73, s74
s_xor_b32 s73, s73, s3""")
    for k in range(1, 16): a(f"v_fmamk_f32 v{112+k}, v4, {fh(16*(k>>2)+(k&3))}, v112")
    for k in range(16): a(f"v_fract_f32 v{112+k}, v{112+k}")
    for k in range(16): a(f"v_cos_f32 v{128+k}, v{112+k}\nv_sin_f32 v{112+k}, v{112+k}")
    for ks in range(4):
        for h in range(2):
            a(f"v_cvt_pk_bf16_f32 v{PF+4*ks+h}, v{128+4*ks+2*h}, v{129+4*ks+2*h}\nv_cvt_pk_bf16_f32 v{QF+4*ks+h}, v{112+4*ks+2*h}, v{113+4*ks+2*h}")
            a(f"v_xor_b32 v{QF+4*ks+2+h}, s75, v{PF+4*ks+h}\nv_xor_b32 v{PF+4*ks+2+h}, s73, v{QF+4*ks+h}\nv_xor_b32 v{QF+4*ks+h}, s74, v{QF+4*ks+h}")
    a("s_cmp_eq_u32 s66, 0\ns_cbranch_scc0 L_twd\ns_cmp_eq_u32 s67, 0\ns_cselect_b32 s73, -1, 0\ns_cselect_b32 s75, 0, -1")
    for k in range(8):
        for h in range(2): a(f"v_and_b32 v{PF+4*k+2+h}, s75, v{PF+4*k+h}\nv_and_b32 v{PF+4*k+h}, s73, v{PF+4*k+h}")
    a(f"L_twd:\ns_add_u32 s3, s91, {cnt_off(2)}\ns_waitcnt vmcnt(0)")
    E, sv = a.signal(2, "s3")
    a(f"{E}:")
    a.reset_counts()
    a.stamp()
    for n in range(6, 21): wo(n)
    a(f"""s_mul_i32 s73, s65, 72
s_sub_u32 s3, 576, s73
s_cmp_ge_u32 s65, 4
s_cselect_b32 s73, s3, s73
s_cselect_b32 s74, -16, 16
s_cselect_b32 s75, 2, 1
s_lshl_b32 s76, s74, 4
s_lshl_b32 s3, s66, 4
s_lshl_b32 s77, s{sW}, 2
s_add_u32 s3, s3, s77
s_mul_i32 s3, s3, 576
s_add_u32 s3, s3, s73
s_lshl_b32 s3, s3, 4
s_add_u32 s3, s3, {GM-1024}
v_mul_lo_u32 v4, v1, s74
v_mul_u32_u24 v5, 9216, v2
v_add3_u32 v8, v4, v5, s3
v_mov_b32 v9, v8
s_and_b32 s3, s65, 3
s_cmp_eq_u32 s3, 0
s_cselect_b32 s77, 0x00010001, 0
s_mov_b32 exec_lo, s77
s_mov_b32 exec_hi, s77
v_mov_b32 v9, {OOB}
s_mov_b64 exec, -1
s_sub_u32 s77, 7, s65
s_min_u32 s77, s77, s65
s_lshl_b32 s77, s77, 1
v_and_b32 v4, 3, v0
v_min_u32 v4, s75, v4
v_add_u32 v4, s77, v4
v_and_b32 v5, 4, v0
v_lshl_add_u32 v4, v5, 1, v4
v_min_u32 v4, 15, v4
v_lshlrev_b32 v10, 8, v4
s_mov_b32 s3, {cnt_off(2)}""")
    a.poll(WS, "v10", "s3", 16)
    a.stamp()
    a(f"s_mul_i32 s77, s{sW}, 5120\ns_mov_b32 s78, 1024")
    for pq in range(2):
        for t in range(5):
            a(f"s_add_u32 m0, s77, {GI+pq*20480+t*1024}\ns_nop 0")
            a(f"buffer_load_dwordx4 v{9 if (pq and t == 0) else 8}, {srd(WS)}, s78 offen sc1 lds")
            if t < 4: a("s_add_u32 s78, s78, s76")
        if pq == 0: a(f"s_mov_b32 s78, {1024+288*16}")
    a(f"""v_lshrrev_b32 v4, 1, v2
v_mul_u32_u24 v4, 18, v4
v_and_b32 v5, 1, v2
v_lshl_add_u32 v4, v5, 3, v4
v_lshrrev_b32 v5, 2, v1
v_lshl_add_u32 v4, v5, 1, v4
v_mul_u32_u24 v4, 144, v4
v_and_b32 v6, 3, v0
v_lshlrev_b32 v6, 3, v6
v_add_u32 v6, {WOI}, v6
v_add_u32 v10, v4, v6
v_add_u32 v11, {8*5184}, v10
v_lshrrev_b32 v4, 1, v5
v_lshl_add_u32 v4, v2, 2, v4
v_mul_u32_u24 v4, 18, v4
v_and_b32 v5, 1, v5
v_add3_u32 v4, v4, v5, 16
v_mul_u32_u24 v4, 144, v4
v_add_u32 v12, v4, v6
s_lshl_b32 s3, s71, 1
s_add_u32 s3, s3, s72
s_mul_i32 s79, s3, 18432
s_add_u32 s79, s79, {OM}
s_lshl_b32 s80, s3, 6
s_add_u32 s80, s80, {GATE}
v_lshlrev_b32 v248, 2, v1
s_mul_i32 s3, s{sW}, 2560
s_add_u32 s3, s3, {OS}
v_mul_u32_u24 v4, 160, v1
v_lshl_add_u32 v4, v2, 3, v4
v_add_u32 v249, s3, v4
v_lshl_add_u32 v4, v13, 4, v3
v_add_u32 v250, s3, v4
v_mul_u32_u24 v4, {73728-144}, v13
v_add_u32 v251, v4, v3
s_lshl_b32 s3, s72, 10
s_add_u32 s3, s3, s71
s_mul_i32 s81, s3, 1152
s_mul_i32 s3, s65, 144
s_add_u32 s81, s81, s3
s_mov_b32 s{OUT}, s52
s_mov_b32 s{OUT+1}, s53
s_mov_b32 s{OUT+2}, {2048*1152}
s_mov_b32 s{OUT+3}, 0x20000
v_lshrrev_b32 v4, 5, v0
v_lshlrev_b32 v252, 11, v4
s_lshr_b32 s82, s67, 2
s_lshl_b32 s82, s82, 8
s_add_u32 s82, s82, {cnt_off(3)}
s_waitcnt vmcnt(0)""")
    a.stamp()
    a("s_barrier")
    a.stamp()
    YA, BA, RING, PRE = 16, 36, 128, 6
    def rdg(s):
        b = GB + 20*(s & 1)
        for t in range(5): a(f"ds_read_b128 {vr(b+4*t,4)}, v3 offset:{GI+s*5120+t*1024}", tag=("gi", s))
    def rdw(ks, ts=range(5)):
        b = RING + 20*(ks % PRE)
        for t in ts:
            for h in range(2):
                if ks < 16: r, of = (10 if ks < 8 else 11), (ks & 7)*5184 + h*144
                else: r, of = 12, (ks-16)*41472 + h*5184
                a(f"ds_read_b64_tr_b16 {vr(b+4*t+2*h,2)}, v{r} offset:{of+t*32}", tag=("wo", ks))
    rdg(0)
    for s in range(8):
        if s + 1 < 8: rdg(s + 1)
        a.wait(lg=("gi", s))
        for t in range(5): mfma16(a, YA+4*t, vr(GB+20*(s&1)+4*t, 4), vr(PF+4*s, 4), "0" if s == 0 else vr(YA+4*t, 4))
    for ks in range(PRE): rdw(ks)
    a.stamp()
    E = a.lab("c2")
    a(f"s_cmp_lg_u32 s{sW}, 0\ns_cbranch_scc1 {E}")
    a.poll(WS, "v252", "s82", 16)
    a(f"{E}:\ns_barrier")
    a.stamp()
    for ks in range(18):
        if ks % 4 == 0 and ks: a("s_add_u32 s79, s79, 4096")
        a(f"buffer_load_dwordx4 {vr(OB+4*ks,4)}, v3, {srd(WS)}, s79 offen offset:{(ks&3)*1024} sc1", tag=("o", ks))
    a(f"buffer_load_dword v4, v248, {srd(WS)}, s80 offen sc1", tag="g")
    for ks in range(18):
        a.wait(vm=("o", ks), lg=("wo", ks))
        for t in range(5):
            mfma16(a, BA+4*t, vr(RING+20*(ks % PRE)+4*t, 4), vr(OB+4*ks, 4), "0" if ks == 0 else vr(BA+4*t, 4))
            if ks + PRE < 18: rdw(ks + PRE, [t])
    a.wait(vm="g")
    a.stamp()
    for t in range(5):
        for h in range(2):
            a(f"v_pk_fma_f32 {vr(BA+4*t+2*h,2)}, {vr(YA+4*t+2*h,2)}, v[4:5], {vr(BA+4*t+2*h,2)} op_sel_hi:[1,0,1]")
        a(f"v_cvt_pk_bf16_f32 v{BA+4*t}, v{BA+4*t}, v{BA+4*t+1}\nv_cvt_pk_bf16_f32 v{BA+4*t+1}, v{BA+4*t+2}, v{BA+4*t+3}")
        a(f"ds_write_b64 v249, {vr(BA+4*t,2)} offset:{t*32}")
    for n in range(3): a(f"ds_read_b128 {vr(56+4*n,4)}, v250 offset:{n*7*160}", tag=("os", n))
    for n in range(3):
        if n == 2: a.exec_((1 << 18) - 1)
        a.wait(lg=("os", n))
        a(f"buffer_store_dwordx4 {vr(56+4*n,4)}, v251, {srd(OUT)}, s81 offen")
        if n < 2: a(f"s_add_u32 s81, s81, {7*73728}")
    if diag:
        a.full(); a("s_waitcnt vmcnt(0)")
    a.stamp_end()
    a("L_end:\ns_endpgm")
    return a

HEADER = open(os.path.join(os.path.dirname(os.path.abspath(__file__)), "header.txt")).read()
def module(a):
    return HEADER + f"""; @launch grid=(256,1,1) block=(512,1,1) lds={LDS_BYTES}
.amdgcn_target "amdgcn-amd-amdhsa--gfx950"
.text
.globl {KN}
.p2align 8
.type {KN},@function
{KN}:
""" + a.text() + f""".section .rodata,"a"
.p2align 6
.amdhsa_kernel {KN}
  .amdhsa_next_free_vgpr 256
  .amdhsa_next_free_sgpr 102
  .amdhsa_accum_offset 256
  .amdhsa_group_segment_fixed_size 0
  .amdhsa_kernarg_size 104
  .amdhsa_user_sgpr_count 2
  .amdhsa_user_sgpr_kernarg_segment_ptr 1
  .amdhsa_system_sgpr_workgroup_id_x 1
.end_amdhsa_kernel
"""
def code_size(src):
    open("_g.s", "w").write(src)
    r = subprocess.run(["clang", "-x", "assembler", "-target", "amdgcn-amd-amdhsa", "-mcpu=gfx950", "-c", "_g.s", "-o", "_g.o"], capture_output=True, text=True)
    assert r.returncode == 0, r.stderr[:3000]
    o = subprocess.run(["llvm-readelf", "-S", "_g.o"], capture_output=True, text=True).stdout
    m = re.search(r"\.text\s+PROGBITS\s+\S+\s+\S+\s+(\S+)", o)
    return int(m.group(1), 16)
def build(path, **kw):
    sz = code_size(module(gen(nlines=100, **kw)))
    a = gen(nlines=sz//128 - 1, **kw)
    src = module(a); open(path, "w").write(src)
    print(path, "code bytes", code_size(src), "auto nops", a.nops)
if __name__ == "__main__":
    build("gated_mix__spectral_fnet__linear_kernel_hedgehog__prompt.s")
    build("k_diag.s", diag=True)
```
